```python
import torch

def _softmax(x, axis=-1):
    return torch.softmax(x, dim=axis)

def _gelu(x):
    return torch.nn.functional.gelu(x, approximate='tanh')

def _silu(x):
    return torch.nn.functional.silu(x)

def _sigmoid(x):
    return torch.sigmoid(x)

def _layernorm(x, axis=-1, eps=1e-05):
    m = x.mean(dim=axis, keepdim=True)
    v = x.var(dim=axis, keepdim=True, unbiased=False)
    return (x - m) / torch.sqrt(v + eps)

def _scatter_add(tgt, idx, src, axis=0):
    return tgt.clone().index_add_(axis, idx, src)

def _segment_sum(src, seg, n):
    out = torch.zeros((n,) + src.shape[1:], dtype=src.dtype)
    return out.index_add_(0, seg, src)

def _pad(x, pw):
    flat = tuple((v for pair in reversed(pw) for v in pair))
    return torch.nn.functional.pad(x, flat)
kernel_name = 'standalone__kv_cache_quant_pre_rope_vs_post_rope__prompt'

def setup_inputs():

    _w = lambda a: (lambda t: t.to(torch.bfloat16) if t.is_floating_point() else t)(torch.as_tensor(a))
    B, Sq, Skv = (1, 2048, 2048)
    H, Dh0 = (4, 128)
    G = 128 if 128 > 0 else Dh0
    G = max(2, G // 2 * 2)
    Dh = max(G, Dh0 // G * G)
    Skv = max(Skv, Sq)
    ng = Dh // G
    bits = 2 if 2 > 1 else 4
    bits = max(2, min(8, bits))
    qmax = (1 << bits) - 1
    half = Dh // 2
    inv = 1.0 / 10000.0 ** (torch.arange(half) / max(1, half))
    ang_k = torch.arange(Skv)[:, None] * inv[None, :]
    ang_q = torch.arange(Skv - Sq, Skv)[:, None] * inv[None, :]
    kc = torch.cat([torch.cos(ang_k), torch.cos(ang_k)], dim=-1)
    ks = torch.cat([torch.sin(ang_k), torch.sin(ang_k)], dim=-1)
    qc = torch.cat([torch.cos(ang_q), torch.cos(ang_q)], dim=-1)
    qs = torch.cat([torch.sin(ang_q), torch.sin(ang_q)], dim=-1)
    qk_i = torch.randint(0, qmax + 1, (B, H, Skv, Dh)).to(torch.int32)
    qv_i = torch.randint(0, qmax + 1, (B, H, Skv, Dh)).to(torch.int32)
    ksc = torch.abs((lambda *s: torch.randn(*s, dtype=torch.bfloat16) * 0.4)(B, H, Skv, ng)) * 0.1 + 0.01
    kzp = torch.full((B, H, Skv, ng), qmax / 2.0)
    vsc = torch.abs((lambda *s: torch.randn(*s, dtype=torch.bfloat16) * 0.4)(B, H, Skv, ng)) * 0.1 + 0.01
    vzp = torch.full((B, H, Skv, ng), qmax / 2.0)
    return {'q': _w((lambda *s: torch.randn(*s, dtype=torch.bfloat16) * 6.4)(B, H, Sq, Dh) * 0.5), 'qk': _w(qk_i), 'k_scales': _w(ksc), 'k_zeros': _w(kzp), 'qv': _w(qv_i), 'v_scales': _w(vsc), 'v_zeros': _w(vzp), 'q_cos': _w(qc), 'q_sin': _w(qs), 'k_cos': _w(kc), 'k_sin': _w(ks)}

def reference(q, qk, k_scales, k_zeros, qv, v_scales, v_zeros, q_cos, q_sin, k_cos, k_sin):
    B, H, Sq, Dh = q.shape
    ng = k_scales.shape[-1]
    G = Dh // ng
    half = Dh // 2
    ks = (lambda x, n, axis: torch.repeat_interleave(x, n, dim=axis))(k_scales, G, axis=-1)
    kz = (lambda x, n, axis: torch.repeat_interleave(x, n, dim=axis))(k_zeros, G, axis=-1)
    k = ((lambda x, dt: x.to(dt))(qk, q.dtype) - kz) * ks
    vs = (lambda x, n, axis: torch.repeat_interleave(x, n, dim=axis))(v_scales, G, axis=-1)
    vz = (lambda x, n, axis: torch.repeat_interleave(x, n, dim=axis))(v_zeros, G, axis=-1)
    v = ((lambda x, dt: x.to(dt))(qv, q.dtype) - vz) * vs
    k1 = k[..., :half].clone()
    k2 = k[..., half:].clone()
    krh = torch.concatenate([-k2, k1], axis=-1)
    kr = k * k_cos[None, None, :, :] + krh * k_sin[None, None, :, :]
    q1 = q[..., :half].clone()
    q2 = q[..., half:].clone()
    qrh = torch.concatenate([-q2, q1], axis=-1)
    qr = q * q_cos[None, None, :, :] + qrh * q_sin[None, None, :, :]
    logits = torch.einsum('bhqd,bhkd->bhqk', qr, kr) * float(Dh) ** (-0.5)
    attn = _softmax(logits, axis=-1)
    out = torch.einsum('bhqk,bhkd->bhqd', attn, v)
    return out
```

```python
from common import *

A_O = 0
A_Q = 64
A_K = 96
NAGPR = 160
V_LANE16 = 1
V_L4K = 2
V_L8K = 3
V_VSA = 4
V_L0 = 5; V_L1 = 6
V_LANE = 7
V_T = 8
V_S = 16
V_P = 48
V_VB = 64
V_VR = 96
V_VS = 112
NVGPR = 128
LDS_VS = 0
LDS_L = 8192
LDS_X = 9216
LDS_TOTAL = LDS_X + 65536

S_KV = 8
S_WS = 12
S_OUT = 16
S_W = 20; S_HEAD = 21; S_QT = 22; S_ROT = 23
S_CNT = 24; S_K0 = 25; S_K1 = 26; S_IT = 27

def kload(step, slot, soff, ld=""):
    va = [V_LANE16, V_L4K][step // 4]
    return f"  buffer_load_dwordx4 {ar(A_K + 32*slot + 4*step, 4)}, v{va}, s[{S_KV}:{S_KV+3}], s{soff} offen offset:{(step%4)*1024} {ld}"
def vload(t, slot, soff, ld=""):
    return f"  buffer_load_dwordx4 {vr(V_VR + 8*slot + 4*t, 4)}, v{V_L8K}, s[{S_KV}:{S_KV+3}], s{soff} offen offset:{t*1024} {ld}"
def qk(step, slot, sbuf):
    d = vr(V_S + 16*sbuf, 16)
    c = "0" if step == 0 else d
    return f"  v_mfma_f32_32x32x16_bf16 {d}, {ar(A_K + 32*slot + 4*step, 4)}, {ar(A_Q + 4*step, 4)}, {c}"
def pv(n, pbuf):
    t, dt = n // 4, n % 4
    o = ar(A_O + 16*dt, 16)
    return f"  v_mfma_f32_32x32x16_bf16 {o}, {vr(V_VB + 4*n, 4)}, {vr(V_P + 8*pbuf + 4*t, 4)}, {o}"
def cvt4(n, b, slot):
    return f"  v_cvt_scalef32_pk_bf16_fp4 v{V_VB + 4*n + b}, v{V_VR + 8*slot + n}, 1.0 op_sel:[{b&1},{b>>1},0]"

def iteration(A, p, vs_off):
    S = V_S + 16*p
    ex = lambda r: f"  v_exp_f32 v{S+r}, v{S+r}"
    ad = lambda r: f"  v_add_f32 v{[V_L0, V_L1][r&1]}, v{[V_L0, V_L1][r&1]}, v{S+r}"
    mu = lambda r: f"  v_mul_f32 v{S+r}, v{S+r}, v{V_VS+r}"
    pk = lambda k: f"  v_cvt_pk_bf16_f32 v{V_P + 8*p + k}, v{S+2*k}, v{S+2*k+1}"
    sK_new, sK_old = (S_K1, S_K0) if p == 0 else (S_K0, S_K1)
    A(f"  s_add_u32 s{S_CNT}, s{S_CNT}, 0x4000")
    A(f"  s_xor_b32 s{sK_new}, s{S_CNT}, s{S_ROT}")
    for s in range(8):
        if s % 2 == 0:
            A("  s_waitcnt vmcnt(18)")
        A(qk(s, 1-p, 1-p))
        A(kload(s, 1-p, sK_new))
        if s < 2:
            for g in (2*s, 2*s+1):
                A(f"  ds_read_b128 {vr(V_VS + 4*g, 4)}, v{V_VSA} offset:{vs_off + 32*g}")
        A(ex(2*s)); A(ex(2*s+1))
        if s >= 1:
            A(ad(2*s-2)); A(ad(2*s-1))
        if s == 3: A("  s_waitcnt lgkmcnt(0)")
        if s in (3, 5, 7):
            k = (s - 3)
            A(mu(k)); A(mu(k+1))
    rest = [ad(14), ad(15), pk(0), mu(6), mu(7), pk(1), pk(2), mu(8), mu(9), pk(3),
            mu(10), mu(11), pk(4), mu(12), mu(13), pk(5), mu(14), mu(15), pk(6), pk(7)]
    cnt = [3, 2, 3, 2, 3, 2, 3, 2]
    for n in range(8):
        A(pv(n, 1-p))
        if n == 0: A("  s_waitcnt vmcnt(18)")
        ops = [rest.pop(0) for _ in range(cnt[n])]
        c = [cvt4(n, b, p) for b in range(4)]
        seq = [c[0], ops[0], c[1], ops[1], c[2]] + ops[2:] + [c[3]]
        for x in seq: A(x)
        if n == 3: A(vload(0, p, sK_old))
        if n == 7: A(vload(1, p, sK_old))

def gen_attn(A, name):
    A(f""".p2align 8
.type {name},@function
{name}:
  s_cmp_ge_u32 s2, 256
  s_cbranch_scc1 LA_end
  s_load_dwordx2 s[4:5], s[0:1], 104       ; ws
  s_load_dwordx2 s[6:7], s[0:1], 88        ; out""")
    stamp(A, 0, True); stamp(A, 1)
    if PROBE: A("  s_memrealtime s[72:73]")
    A(f"""  v_lshrrev_b32 v1, 6, v0
  v_and_b32 v{V_LANE}, 63, v0
  v_readfirstlane_b32 s{S_W}, v1
  v_lshlrev_b32 v{V_LANE16}, 4, v{V_LANE}
  v_add_u32 v{V_L4K}, 0x1000, v{V_LANE16}
  v_add_u32 v{V_L8K}, 0x2000, v{V_LANE16}
  s_and_b32 s28, s2, 7
  s_lshr_b32 s{S_HEAD}, s28, 1
  s_lshr_b32 s29, s2, 3
  s_and_b32 s28, s28, 1
  s_lshl_b32 s{S_QT}, s29, 1
  s_add_u32 s{S_QT}, s{S_QT}, s28          ; qtile
  s_and_b32 s{S_ROT}, s29, 15
  s_lshl_b32 s30, s{S_ROT}, 7
  s_lshl_b32 s{S_ROT}, s{S_ROT}, 14
  s_lshl_b32 s28, s{S_HEAD}, 2
  s_add_u32 s28, s28, s{S_W}               ; head*4+w
  s_lshl_b32 s29, s28, 18                  ; *16*16384
  s_lshl_b32 s31, s28, 11                  ; *512*4
  s_add_u32 s31, s31, {VS_OFF:#x}
  s_lshl_b32 s32, s{S_HEAD}, 6
  s_add_u32 s32, s32, s{S_QT}              ; head*64+qtile
  s_lshl_b32 s33, s32, 13
  s_add_u32 s34, s33, {Q_OFF:#x}           ; Q' soffset
  s_waitcnt lgkmcnt(0)
  s_add_u32 s{S_KV}, s4, s29
  s_addc_u32 s{S_KV+1}, s5, 0
  s_mov_b32 s{S_KV+2}, 0x40000
  s_mov_b32 s{S_KV+3}, 0x20000""")
    srd(A, S_WS, 4, 5, WS_USED)
    for s in range(8):
        va = [V_LANE16, V_L4K][s // 4]
        A(f"  buffer_load_dwordx4 {ar(A_Q + 4*s, 4)}, v{va}, s[{S_WS}:{S_WS+3}], s34 offen offset:{(s%4)*1024}")
    A(f"  s_mov_b32 s{S_K0}, s{S_ROT}             ; tile 0")
    A(f"  s_xor_b32 s{S_K1}, s{S_ROT}, 0x4000     ; tile 1")
    for s in range(8):
        A(kload(s, 0, S_K0))
    A(f"  buffer_load_dwordx4 {vr(V_S, 4)}, v{V_LANE16}, s[{S_WS}:{S_WS+3}], s31 offen")
    A(f"  buffer_load_dwordx4 {vr(V_S+16, 4)}, v{V_LANE16}, s[{S_WS}:{S_WS+3}], s31 offen offset:1024")
    for s in range(8):
        A(kload(s, 1, S_K1))
    A(vload(0, 0, S_K0)); A(vload(1, 0, S_K0))
    srd(A, S_OUT, 6, 7, 2 << 20)
    for r in range(64): A(f"  v_accvgpr_write_b32 a{A_O + r}, 0")
    for r in range(8): A(f"  v_mov_b32 v{V_P + 8 + r}, 0")
    for r in range(32): A(f"  v_mov_b32 v{V_VB + r}, 0")
    A(f"  v_mov_b32 v{V_L0}, 0")
    A(f"  v_mov_b32 v{V_L1}, 0")
    A(f"  s_lshl_b32 s35, s{S_W}, 11")
    A(f"  v_xor_b32 v{V_T}, s30, v{V_LANE16}")
    A(f"  v_xor_b32 v{V_T+1}, 0x400, v{V_T}")
    A(f"  v_add_u32 v{V_T}, s35, v{V_T}")
    A(f"  v_add_u32 v{V_T+1}, s35, v{V_T+1}")
    A(f"  v_lshrrev_b32 v{V_VSA}, 5, v{V_LANE}")
    A(f"  v_lshlrev_b32 v{V_VSA}, 4, v{V_VSA}")
    A(f"  v_add_u32 v{V_VSA}, s35, v{V_VSA}")
    stamp(A, 2)
    A("  s_waitcnt vmcnt(10)")
    stamp(A, 3)
    A(f"  ds_write_b128 v{V_T}, {vr(V_S, 4)}")
    A(f"  ds_write_b128 v{V_T+1}, {vr(V_S+16, 4)}")
    A(f"  s_xor_b32 s{S_K0}, s{S_ROT}, 0x8000     ; tile 2")
    A(f"  s_mov_b32 s{S_CNT}, 0x8000")
    A("  s_waitcnt lgkmcnt(0)")
    for s in range(8):
        A(qk(s, 0, 0))
        A(kload(s, 0, S_K0))
    A(vload(0, 1, S_K1)); A(vload(1, 1, S_K1))
    A(f"  s_mov_b32 s{S_IT}, 8")
    A("  s_nop 7")
    stamp(A, 4)
    if PROBE: A("  s_memrealtime s[74:75]")
    A(".p2align 6")
    A("LA_loop:")
    iteration(A, 0, 0)
    iteration(A, 1, 128)
    A(f"  v_add_u32 v{V_VSA}, 256, v{V_VSA}")
    A(f"  s_sub_u32 s{S_IT}, s{S_IT}, 1")
    A(f"  s_cmp_lg_u32 s{S_IT}, 0")
    A("  s_cbranch_scc1 LA_loop")
    stamp(A, 5)
    if PROBE: A("  s_memrealtime s[76:77]")
    for n in range(8):
        A(pv(n, 1))
        if n == 0:
            A(f"  v_add_f32 v{V_L0}, v{V_L0}, v{V_L1}")
            A(f"  s_lshl_b32 s35, s{S_W}, 8")
            A(f"  v_lshlrev_b32 v{V_T}, 2, v{V_LANE}")
            A(f"  v_add_u32 v{V_T}, s35, v{V_T}")
            A(f"  ds_write_b32 v{V_T}, v{V_L0} offset:{LDS_L}")
        if n == 1:
            A(f"  s_lshl_b32 s35, s{S_W}, 12")
            A(f"  v_add_u32 v{V_T+1}, s35, v{V_LANE16}")
            A(f"  s_lshl_b32 s35, s{S_W}, 14")
            A(f"  v_add_u32 v{V_T+2}, s35, v{V_LANE16}")
            A(f"  v_and_b32 v{V_T+3}, 31, v{V_LANE}")
            A(f"  v_lshlrev_b32 v{V_T+3}, 2, v{V_T+3}")
    A("  s_nop 7")
    A("  s_nop 3")
    X = V_S
    for g in range(4):
        A(f"  s_cmp_eq_u32 s{S_W}, {g}")
        A(f"  s_cbranch_scc1 LA_own{g}")
        for dt in range(4):
            A(f"  ds_write_b128 v{V_T+1}, {ar(A_O + 16*dt + 4*g, 4)} offset:{LDS_X + g*16384 + dt*1024}")
        A(f"  s_branch LA_nxt{g}")
        A(f"LA_own{g}:")
        for dt in range(4):
            for i in range(4):
                A(f"  v_accvgpr_read_b32 v{X + 4*dt + i}, a{A_O + 16*dt + 4*g + i}")
        A(f"LA_nxt{g}:")
    for k in (1, 2, 3):
        A(f"  s_add_u32 s35, s{S_W}, {k}")
        A("  s_and_b32 s35, s35, 3")
        A("  s_lshl_b32 s35, s35, 12")
        A(f"  v_add_u32 v{V_T+3+k}, s35, v{V_T+2}")
    A("  s_waitcnt vmcnt(0) lgkmcnt(0)")
    stamp(A, 6)
    A("  s_barrier")
    stamp(A, 7)
    R = V_VB
    LR = V_P
    for w2 in range(4):
        A(f"  ds_read2_b32 {vr(LR + 2*w2, 2)}, v{V_T+3} offset0:{(LDS_L//4 + w2*64) % 256} offset1:{(LDS_L//4 + w2*64 + 32) % 256}" if False else
          f"  ds_read2_b32 {vr(LR + 2*w2, 2)}, v{V_T+7} offset0:{w2*64} offset1:{w2*64+32}")
    A.L.insert(len(A.L) - 6 - (2 if DIAG else 0), f"  v_add_u32 v{V_T+7}, {LDS_L}, v{V_T+3}")
    for k in range(3):
        for dt in range(4):
            A(f"  ds_read_b128 {vr(R + 16*k + 4*dt, 4)}, v{V_T+4+k} offset:{LDS_X + dt*1024}")
    A(f"  v_and_b32 v{V_T}, 31, v{V_LANE}")
    A(f"  v_lshlrev_b32 v{V_T}, 8, v{V_T}")
    A(f"  v_and_b32 v{V_T+1}, 32, v{V_LANE}")
    A(f"  v_add_u32 v{V_T}, v{V_T}, v{V_T+1}")
    A(f"  s_lshl_b32 s35, s{S_W}, 6")
    A(f"  s_add_u32 s33, s33, s35")
    A("  s_waitcnt lgkmcnt(12)")
    A(f"  v_add_f32 v{LR}, v{LR}, v{LR+1}")
    A(f"  v_add_f32 v{LR+2}, v{LR+2}, v{LR+3}")
    A(f"  v_add_f32 v{LR+4}, v{LR+4}, v{LR+5}")
    A(f"  v_add_f32 v{LR+6}, v{LR+6}, v{LR+7}")
    A(f"  v_add_f32 v{LR}, v{LR}, v{LR+2}")
    A(f"  v_add_f32 v{LR+4}, v{LR+4}, v{LR+6}")
    A(f"  v_add_f32 v{LR}, v{LR}, v{LR+4}        ; l total")
    A(f"  v_rcp_f32 v{LR+1}, v{LR}")
    A(f"  s_mov_b32 s36, {f32bits(2.0**-40):#x}")
    A(f"  s_mov_b32 s37, {f32bits(2.0**40):#x}")
    A(f"  v_cmp_nle_f32 vcc, s36, v{LR}          ; !(lo <= l)")
    A(f"  v_cmp_nge_f32 s[38:39], s37, v{LR}     ; !(hi >= l)")
    for k in range(3):
        A(f"  s_waitcnt lgkmcnt({8 - 4*k})")
        for j in range(16):
            A(f"  v_add_f32 v{X+j}, v{X+j}, v{R + 16*k + j}")
    A("  s_or_b64 s[38:39], s[38:39], vcc")
    A(f"  v_cmp_u_f32 vcc, v{X}, v{X}")
    A("  s_or_b64 s[38:39], s[38:39], vcc")
    A("  s_cmp_lg_u64 s[38:39], 0")
    A("  s_cbranch_scc1 LA_fallback")
    for j in range(16):
        A(f"  v_mul_f32 v{X+j}, v{X+j}, v{LR+1}")
    for i in range(4):
        A(f"  v_cvt_pk_bf16_f32 v{R + 2*i}, v{X + i}, v{X + 4 + i}")
        A(f"  v_cvt_pk_bf16_f32 v{R + 2*i + 1}, v{X + 8 + i}, v{X + 12 + i}")
    A(f"  buffer_store_dwordx4 {vr(R, 4)}, v{V_T}, s[{S_OUT}:{S_OUT+3}], s33 offen")
    A(f"  buffer_store_dwordx4 {vr(R+4, 4)}, v{V_T}, s[{S_OUT}:{S_OUT+3}], s33 offen offset:16")
    if PROBE:
        probe_tail(A)
    if DIAG:
        stamp(A, 8)
        A("  s_waitcnt vmcnt(0)")
        stamp(A, 9); stamp(A, 10, True)
        A(f"  s_lshl_b32 s35, s2, 2")
        A(f"  s_add_u32 s35, s35, s{S_W}")
        stamp_dump(A, 4, 35, 1, 11)
    A("LA_end:")
    A("  s_endpgm")
    gen_fallback(A)

def gen_fallback(A):
    FS = 16
    FO = 32
    FP = 48
    FV = 56
    FC = 64
    FZ = 80
    FSC = 88
    FM = 96; FL = 97; FA = 98; FB = 99; FAL = 100; FVA = 101; FSA = 102; FT = 103
    A("LA_fallback:")
    A("  s_load_dwordx4 s[40:43], s[0:1], 32")
    A("  s_load_dwordx2 s[44:45], s[0:1], 48      ; v_zeros")
    A(f"  s_lshl_b32 s29, s{S_HEAD}, 20")
    A(f"  s_add_u32 s{S_KV}, s4, s29")
    A(f"  s_addc_u32 s{S_KV+1}, s5, 0")
    A(f"  s_mov_b32 s{S_KV+2}, 0x100000")
    A(f"  s_mov_b32 s{S_KV+3}, 0x20000")
    A(f"  v_mov_b32 v{FM}, 0xff800000")
    A(f"  v_mov_b32 v{FL}, 0")
    for r in range(16): A(f"  v_mov_b32 v{FO+r}, 0")
    A(f"  v_lshrrev_b32 v{FT}, 5, v{V_LANE}")
    A(f"  v_lshlrev_b32 v{FSA}, 3, v{FT}")
    A(f"  v_lshlrev_b32 v{FVA}, 11, v{FT}")
    A(f"  v_and_b32 v{FT}, 31, v{V_LANE}")
    A(f"  v_lshl_add_u32 v{FVA}, v{FT}, 2, v{FVA}")
    A(f"  s_lshl_b32 s35, s{S_W}, 7")
    A(f"  v_add_u32 v{FVA}, s35, v{FVA}")
    A("  s_waitcnt lgkmcnt(0)")
    srd(A, 48, 40, 41, 4 << 20)
    srd(A, 52, 42, 43, 16384)
    srd(A, 56, 44, 45, 16384)
    A("  s_mov_b32 s60, 0                         ; tile")
    A("LF_loop:")
    A("  s_lshl_b32 s61, s60, 14                  ; K' soffset")
    A(f"  s_lshl_b32 s62, s{S_HEAD}, 6")
    A("  s_add_u32 s62, s62, s60")
    A("  s_lshl_b32 s63, s62, 6")
    A("  s_lshl_b32 s62, s62, 14")
    for s in range(8): A(kload(s, 0, 61))
    for g in range(4):
        for i in range(4):
            A(f"  buffer_load_dword v{FC + 4*g + i}, v{FVA}, s[48:51], s62 offen offset:{i*512}")
        A("  s_add_u32 s62, s62, 4096")
    for g in range(4):
        A(f"  buffer_load_dwordx2 {vr(FSC + 2*g, 2)}, v{FSA}, s[52:55], s63 offen offset:{16*g}")
        A(f"  buffer_load_dwordx2 {vr(FZ + 2*g, 2)}, v{FSA}, s[56:59], s63 offen offset:{16*g}")
    A("  s_waitcnt vmcnt(0)")
    for s in range(8):
        c = "0" if s == 0 else vr(FS, 16)
        A(f"  v_mfma_f32_32x32x16_bf16 {vr(FS,16)}, {ar(A_K + 4*s, 4)}, {ar(A_Q + 4*s, 4)}, {c}")
    for r in range(16):
        A(f"  v_cvt_f32_i32 v{FC+r}, v{FC+r}")
        if r % 2 == 0:
            A(f"  v_lshlrev_b32 v{FA}, 16, v{FZ + r//2}")
            A(f"  v_lshlrev_b32 v{FB}, 16, v{FSC + r//2}")
        else:
            A(f"  v_and_b32 v{FA}, 0xffff0000, v{FZ + r//2}")
            A(f"  v_and_b32 v{FB}, 0xffff0000, v{FSC + r//2}")
        A(f"  v_sub_f32 v{FC+r}, v{FC+r}, v{FA}")
        A(f"  v_mul_f32 v{FC+r}, v{FC+r}, v{FB}")
    for k in range(8):
        A(f"  v_cvt_pk_bf16_f32 v{FV+k}, v{FC+2*k}, v{FC+2*k+1}")
    A(f"  v_max3_f32 v{FA}, v{FS}, v{FS+1}, v{FM}")
    for k in range(1, 8):
        A(f"  v_max3_f32 v{FA}, v{FS+2*k}, v{FS+2*k+1}, v{FA}")
    A(f"  v_mov_b32 v{FB}, v{FA}")
    A("  s_nop 1")
    A(f"  v_permlane32_swap_b32 v{FA}, v{FB}")
    A("  s_nop 1")
    A(f"  v_max_f32 v{FA}, v{FA}, v{FB}            ; m_new")
    A(f"  v_sub_f32 v{FAL}, v{FM}, v{FA}")
    A(f"  v_exp_f32 v{FAL}, v{FAL}")
    A(f"  v_mov_b32 v{FM}, v{FA}")
    A(f"  v_mul_f32 v{FL}, v{FL}, v{FAL}")
    for r in range(16): A(f"  v_mul_f32 v{FO+r}, v{FO+r}, v{FAL}")
    for r in range(16): A(f"  v_sub_f32 v{FS+r}, v{FS+r}, v{FM}")
    for r in range(16): A(f"  v_exp_f32 v{FS+r}, v{FS+r}")
    A("  s_nop 0")
    for r in range(16): A(f"  v_add_f32 v{FL}, v{FL}, v{FS+r}")
    for k in range(8):
        A(f"  v_cvt_pk_bf16_f32 v{FP+k}, v{FS+2*k}, v{FS+2*k+1}")
    A("  s_nop 1")
    for t in range(2):
        A(f"  v_mfma_f32_32x32x16_bf16 {vr(FO,16)}, {vr(FV+4*t,4)}, {vr(FP+4*t,4)}, {vr(FO,16)}")
    A("  s_add_u32 s60, s60, 1")
    A("  s_cmp_lt_u32 s60, 64")
    A("  s_cbranch_scc1 LF_loop")
    A(f"  v_mov_b32 v{FB}, v{FL}")
    A("  s_nop 1")
    A(f"  v_permlane32_swap_b32 v{FL}, v{FB}")
    A("  s_nop 1")
    A(f"  v_add_f32 v{FL}, v{FL}, v{FB}")
    A(f"  v_rcp_f32 v{FL}, v{FL}")
    A(f"  v_and_b32 v{FT}, 31, v{V_LANE}")
    A(f"  v_lshlrev_b32 v{FT}, 8, v{FT}")
    A(f"  v_add_u32 v{FT}, v{FT}, v{FSA}")
    A("  s_nop 7")
    for r in range(16): A(f"  v_mul_f32 v{FO+r}, v{FO+r}, v{FL}")
    for k in range(8):
        A(f"  v_cvt_pk_bf16_f32 v{FP+k}, v{FO+2*k}, v{FO+2*k+1}")
    for g in range(4):
        A(f"  buffer_store_dwordx2 {vr(FP+2*g,2)}, v{FT}, s[{S_OUT}:{S_OUT+3}], s33 offen offset:{16*g}")
    A("  s_endpgm")

def probe_tail(A):
    A("  s_waitcnt vmcnt(0)")
    A("  s_memrealtime s[78:79]")
    A(f"  s_mov_b32 s{S_WS+2}, 0x4000000")
    A(f"  s_mov_b32 s40, {PROBE_OFF:#x}")
    A("  v_mov_b32 v30, -1")
    A("  v_mov_b32 v31, 0")
    A("  v_mov_b32 v32, 0")
    A("  v_mov_b32 v33, 0")
    A("  v_mov_b32 v34, 0")
    A("  s_mov_b32 s41, 40")
    A("LPR_loop:")
    A(f"  buffer_load_dwordx4 v[20:23], v{V_LANE16}, s[{S_WS}:{S_WS+3}], s40 offen")
    A("  s_waitcnt vmcnt(0)")
    A("  v_min_u32 v30, v30, v20")
    A("  v_max_u32 v34, v34, v20")
    A("  v_max_u32 v31, v31, v21")
    A("  v_max_u32 v32, v32, v22")
    A("  v_max_u32 v33, v33, v23")
    A("  s_add_u32 s40, s40, 1024")
    A("  s_sub_u32 s41, s41, 1")
    A("  s_cmp_lg_u32 s41, 0")
    A("  s_cbranch_scc1 LPR_loop")
    A("  s_mov_b32 s42, -1\n  s_mov_b32 s43, 0\n  s_mov_b32 s44, 0\n  s_mov_b32 s45, 0\n  s_mov_b32 s46, 0\n  s_mov_b32 s41, 0")
    A("LPR_red:")
    A("  v_readlane_b32 s47, v30, s41\n  s_min_u32 s42, s42, s47")
    A("  v_readlane_b32 s47, v31, s41\n  s_max_u32 s43, s43, s47")
    A("  v_readlane_b32 s47, v32, s41\n  s_max_u32 s44, s44, s47")
    A("  v_readlane_b32 s47, v33, s41\n  s_max_u32 s45, s45, s47")
    A("  v_readlane_b32 s47, v34, s41\n  s_max_u32 s46, s46, s47")
    A("  s_add_u32 s41, s41, 1\n  s_cmp_lt_u32 s41, 64\n  s_cbranch_scc1 LPR_red")
    A("  s_waitcnt lgkmcnt(0)")
    src = {"F": None, "pstart": 46, "pkarg": 43, "pdata": 44, "pend": 45, "astart": 72, "aloop": 74, "aloopend": 76, "aend": 78}[PROBE]
    if src is None:
        A("  s_mov_b32 s48, 0")
    else:
        A(f"  s_sub_u32 s48, s{src}, s42")
        A("  s_mul_i32 s48, s48, 10")
    A("  s_min_u32 s48, s48, 40000")
    A("  s_add_u32 s48, s48, 4000")
    A("LPR_spin:")
    A("  s_memrealtime s[50:51]")
    A("  s_waitcnt lgkmcnt(0)")
    A("  s_sub_u32 s49, s50, s42")
    A("  s_cmp_lt_u32 s49, s48")
    A("  s_cbranch_scc1 LPR_spin")
```

```python
NAME = "standalone__kv_cache_quant_pre_rope_vs_post_rope__prompt"
HEADER = open("cdna_kernels/%s.s.ref" % NAME).read().split("; Override launch geometry")[0]

class Asm:
    def __init__(self):
        self.L = []
    def __call__(self, s=""):
        for line in s.split("\n"):
            self.L.append(line)
    def text(self):
        return "\n".join(self.L) + "\n"

def vr(b, n=1):
    return f"v{b}" if n == 1 else f"v[{b}:{b+n-1}]"
def ar(b, n=1):
    return f"a{b}" if n == 1 else f"a[{b}:{b+n-1}]"
def sr(b, n=1):
    return f"s{b}" if n == 1 else f"s[{b}:{b+n-1}]"

def srd(A, d, lo, hi, nrec):
    A(f"  s_mov_b32 s{d}, s{lo}")
    A(f"  s_mov_b32 s{d+1}, s{hi}")
    A(f"  s_mov_b32 s{d+2}, {nrec}")
    A(f"  s_mov_b32 s{d+3}, 0x20000")

def kdesc(A, name, nvgpr, accum, nsgpr):
    A(f""".amdhsa_kernel {name}
  .amdhsa_next_free_vgpr {nvgpr}
  .amdhsa_next_free_sgpr {nsgpr}
  .amdhsa_accum_offset {accum}
  .amdhsa_group_segment_fixed_size 0
  .amdhsa_kernarg_size 112
  .amdhsa_user_sgpr_count 2
  .amdhsa_user_sgpr_kernarg_segment_ptr 1
  .amdhsa_system_sgpr_workgroup_id_x 1
  .amdhsa_float_denorm_mode_32 3
  .amdhsa_float_denorm_mode_16_64 3
.end_amdhsa_kernel""")

import struct, math
def f32bits(x):
    return struct.unpack("<I", struct.pack("<f", x))[0]
QSCALE = f32bits(math.log2(math.e) / math.sqrt(128.0))
KV_OFF = 0
Q_OFF = 4 << 20
VS_OFF = 6 << 20
WS_USED = (6 << 20) + 32768

import os
DIAG = int(os.environ.get("DIAG", "0"))
DIAG_OFF = 16 << 20
def stamp(A, i, real=False):
    if not DIAG: return
    A(f"  s_mem{'real' if real else ''}time s[{72+2*i}:{73+2*i}]")
def stamp_dump(A, wsreg, idx_expr_sgpr, region, n=15):
    if not DIAG: return
    A("  s_waitcnt lgkmcnt(0)")
    A(f"  s_mov_b32 s64, s{wsreg}")
    A(f"  s_mov_b32 s65, s{wsreg+1}")
    A(f"  s_mov_b32 s66, 0x4000000")
    A(f"  s_mov_b32 s67, 0x20000")
    A(f"  s_lshl_b32 s68, s{idx_expr_sgpr}, 6")
    A(f"  s_add_u32 s68, s68, {DIAG_OFF + region * (1 << 20):#x}")
    A("  s_mov_b64 exec, 1")
    for i in range(16):
        A(f"  v_mov_b32 v{8+i}, s{72+2*i}" if i < n else f"  v_mov_b32 v{8+i}, 0")
    A("  v_mov_b32 v24, 0")
    for i in range(4):
        A(f"  buffer_store_dwordx4 v[{8+4*i}:{11+4*i}], v24, s[64:67], s68 offen offset:{16*i}")

PROBE = os.environ.get("PROBE", "")
PROBE_OFF = 20 << 20
```

```python
from common import *

def rope_and_store(A, a, b, cL, cH, sL, sH, tmp, out, vaddr, srd_ws):
    t0, t1, t2, t3 = tmp, tmp + 1, tmp + 2, tmp + 3
    lo = tmp + 4
    hi = tmp + 6
    for i in range(4):
        for e in range(2):
            j = 2 * i + e
            if e == 0:
                A(f"  v_lshlrev_b32 v{t0}, 16, v{cL+i}")
                A(f"  v_lshlrev_b32 v{t1}, 16, v{sL+i}")
                A(f"  v_lshlrev_b32 v{t2}, 16, v{cH+i}")
                A(f"  v_lshlrev_b32 v{t3}, 16, v{sH+i}")
            else:
                A(f"  v_and_b32 v{t0}, 0xffff0000, v{cL+i}")
                A(f"  v_and_b32 v{t1}, 0xffff0000, v{sL+i}")
                A(f"  v_and_b32 v{t2}, 0xffff0000, v{cH+i}")
                A(f"  v_and_b32 v{t3}, 0xffff0000, v{sH+i}")
            A(f"  v_mul_f32 v{lo+e}, v{a+j}, v{t0}")
            A(f"  v_mul_f32 v{hi+e}, v{b+j}, v{t2}")
            A(f"  v_fma_f32 v{lo+e}, -v{b+j}, v{t1}, v{lo+e}")
            A(f"  v_fmac_f32 v{hi+e}, v{a+j}, v{t3}")
        A(f"  v_cvt_pk_bf16_f32 v{out+i}, v{lo}, v{lo+1}")
        A(f"  v_cvt_pk_bf16_f32 v{out+4+i}, v{hi}, v{hi+1}")

def gen_prep(A, name, stflags=""):
    A(f""".p2align 8
.type {name},@function
{name}:
  s_cmp_ge_u32 s2, 256
  s_cbranch_scc1 LP_end
  s_load_dwordx16 s[4:19], s[0:1], 0
  s_load_dwordx4 s[20:23], s[0:1], 64
  s_load_dwordx2 s[24:25], s[0:1], 80      ; ksin
  s_load_dwordx2 s[26:27], s[0:1], 104     ; ws""")
    stamp(A, 0, True); stamp(A, 1)
    if PROBE: A("  s_memrealtime s[72:73]")
    A(f"""  v_lshrrev_b32 v1, 6, v0
  v_and_b32 v2, 63, v0                     ; lane
  v_readfirstlane_b32 s30, v1
  s_and_b32 s31, s2, 7                     ; xcd
  s_lshr_b32 s32, s2, 3
  s_and_b32 s33, s32, 3                    ; head
  s_lshr_b32 s32, s32, 2
  s_lshl_b32 s32, s32, 3
  s_add_u32 s32, s32, s31                  ; tile
  s_lshl_b32 s34, s33, 6
  s_add_u32 s34, s34, s32                  ; head*64+tile
  s_cmp_ge_u32 s30, 8
  s_cbranch_scc1 LP_v
  ; ---- K / Q roles
  v_lshrrev_b32 v3, 3, v2
  v_and_b32 v4, 7, v2                      ; m
  s_and_b32 s35, s30, 3
  s_lshl_b32 s35, s35, 3                   ; 8*w
  v_add_u32 v3, s35, v3
  v_lshlrev_b32 v5, 8, v3
  v_lshl_add_u32 v5, v4, 4, v5
  s_lshl_b32 s36, s32, 13
  s_lshl_b32 s37, s34, 13                  ; (head*64+tile)*8192
  ; store address: (m/2)*1024 + ((m%2)*32 + row)*16
  v_lshrrev_b32 v6, 1, v4
  v_lshlrev_b32 v6, 10, v6
  v_and_b32 v7, 1, v4
  v_lshl_add_u32 v7, v7, 5, v3
  v_lshl_add_u32 v6, v7, 4, v6
  v_add_u32 v7, 4096, v6
  s_waitcnt lgkmcnt(0)""")
    stamp(A, 2)
    if PROBE: A("  s_memrealtime s[74:75]")
    srd(A, 40, 26, 27, WS_USED)
    A("  s_cmp_ge_u32 s30, 4")
    A("  s_cbranch_scc1 LP_q")
    srd(A, 44, 6, 7, 4 << 20)
    A("  s_lshl_b32 s38, s34, 14              ; (head*64+tile)*32*512")
    A("  v_lshlrev_b32 v8, 1, v5              ; row*512 + 32m")
    A("  buffer_load_dwordx4 v[12:15], v8, s[44:47], s38 offen")
    A("  buffer_load_dwordx4 v[16:19], v8, s[44:47], s38 offen offset:16")
    A("  buffer_load_dwordx4 v[20:23], v8, s[44:47], s38 offen offset:256")
    A("  buffer_load_dwordx4 v[24:27], v8, s[44:47], s38 offen offset:272")
    srd(A, 48, 22, 23, 512 << 10)
    srd(A, 52, 24, 25, 512 << 10)
    A("  buffer_load_dwordx4 v[28:31], v5, s[48:51], s36 offen")
    A("  buffer_load_dwordx4 v[32:35], v5, s[48:51], s36 offen offset:128")
    A("  buffer_load_dwordx4 v[36:39], v5, s[52:55], s36 offen")
    A("  buffer_load_dwordx4 v[40:43], v5, s[52:55], s36 offen offset:128")
    srd(A, 56, 8, 9, 16384)
    srd(A, 60, 10, 11, 16384)
    A("  v_lshlrev_b32 v9, 1, v3")
    A("  s_lshl_b32 s39, s34, 6               ; (head*64+tile)*32*2")
    A("  buffer_load_ushort v10, v9, s[56:59], s39 offen")
    A("  buffer_load_ushort v11, v9, s[60:63], s39 offen")
    stamp(A, 3)
    A("  s_waitcnt vmcnt(0)")
    stamp(A, 4)
    if PROBE: A("  s_memrealtime s[76:77]")
    A("  v_lshlrev_b32 v10, 16, v10           ; ks")
    A("  v_lshlrev_b32 v11, 16, v11           ; kz")
    for j in range(16):
        A(f"  v_cvt_f32_i32 v{12+j}, v{12+j}")
    for j in range(16):
        A(f"  v_sub_f32 v{12+j}, v{12+j}, v11")
    for j in range(16):
        A(f"  v_mul_f32 v{12+j}, v{12+j}, v10")
    rope_and_store(A, 12, 20, 28, 32, 36, 40, 44, 52, None, None)
    A(f"  buffer_store_dwordx4 v[52:55], v6, s[40:43], s38 offen {stflags}")
    A(f"  buffer_store_dwordx4 v[56:59], v7, s[40:43], s38 offen {stflags}")
    if PROBE:
        A("  s_waitcnt vmcnt(0)")
        A("  s_memrealtime s[78:79]")
        A("  s_mul_i32 s35, s2, 10")
        A("  s_add_u32 s35, s35, s30")
        A("  s_lshl_b32 s35, s35, 4")
        A(f"  s_add_u32 s35, s35, {PROBE_OFF:#x}")
        A("  s_mov_b32 s42, 0x4000000")
        A("  s_waitcnt lgkmcnt(0)")
        A("  s_mov_b64 exec, 1")
        A("  v_mov_b32 v8, s72\n  v_mov_b32 v9, s74\n  v_mov_b32 v10, s76\n  v_mov_b32 v11, s78\n  v_mov_b32 v12, 0")
        A("  buffer_store_dwordx4 v[8:11], v12, s[40:43], s35 offen")
    if DIAG:
        stamp(A, 5)
        A("  s_waitcnt vmcnt(0)")
        stamp(A, 6); stamp(A, 7, True)
        A("  s_mul_i32 s35, s2, 10")
        A("  s_add_u32 s35, s35, s30")
        stamp_dump(A, 26, 35, 0, 8)
    A("  s_endpgm")
    A("LP_q:")
    srd(A, 44, 4, 5, 2 << 20)
    A("  buffer_load_dwordx4 v[44:47], v5, s[44:47], s37 offen")
    A("  buffer_load_dwordx4 v[48:51], v5, s[44:47], s37 offen offset:128")
    srd(A, 48, 18, 19, 512 << 10)
    srd(A, 52, 20, 21, 512 << 10)
    A("  buffer_load_dwordx4 v[28:31], v5, s[48:51], s36 offen")
    A("  buffer_load_dwordx4 v[32:35], v5, s[48:51], s36 offen offset:128")
    A("  buffer_load_dwordx4 v[36:39], v5, s[52:55], s36 offen")
    A("  buffer_load_dwordx4 v[40:43], v5, s[52:55], s36 offen offset:128")
    A(f"  s_mov_b32 s38, {QSCALE:#x}")
    A(f"  s_add_u32 s39, s37, {Q_OFF:#x}")
    A("  s_waitcnt vmcnt(4)")
    for i in range(8):
        A(f"  v_lshlrev_b32 v{12+2*i}, 16, v{44+i}")
        A(f"  v_and_b32 v{13+2*i}, 0xffff0000, v{44+i}")
    for j in range(16):
        A(f"  v_mul_f32 v{12+j}, s38, v{12+j}")
    stamp(A, 3)
    A("  s_waitcnt vmcnt(0)")
    stamp(A, 4)
    if PROBE: A("  s_memrealtime s[76:77]")
    rope_and_store(A, 12, 20, 28, 32, 36, 40, 44, 52, None, None)
    A(f"  buffer_store_dwordx4 v[52:55], v6, s[40:43], s39 offen {stflags}")
    A(f"  buffer_store_dwordx4 v[56:59], v7, s[40:43], s39 offen {stflags}")
    if PROBE:
        A("  s_waitcnt vmcnt(0)")
        A("  s_memrealtime s[78:79]")
        A("  s_mul_i32 s35, s2, 10")
        A("  s_add_u32 s35, s35, s30")
        A("  s_lshl_b32 s35, s35, 4")
        A(f"  s_add_u32 s35, s35, {PROBE_OFF:#x}")
        A("  s_mov_b32 s42, 0x4000000")
        A("  s_waitcnt lgkmcnt(0)")
        A("  s_mov_b64 exec, 1")
        A("  v_mov_b32 v8, s72\n  v_mov_b32 v9, s74\n  v_mov_b32 v10, s76\n  v_mov_b32 v11, s78\n  v_mov_b32 v12, 0")
        A("  buffer_store_dwordx4 v[8:11], v12, s[40:43], s35 offen")
    if DIAG:
        stamp(A, 5)
        A("  s_waitcnt vmcnt(0)")
        stamp(A, 6); stamp(A, 7, True)
        A("  s_mul_i32 s35, s2, 10")
        A("  s_add_u32 s35, s35, s30")
        stamp_dump(A, 26, 35, 0, 8)
    A("  s_endpgm")
    A("LP_v:")
    A("  s_and_b32 s35, s30, 1                ; t")
    A("  v_lshrrev_b32 v3, 5, v2              ; hh")
    A("  v_and_b32 v4, 31, v2                 ; m")
    A("  v_lshlrev_b32 v5, 11, v3             ; 4*hh*512")
    A("  v_lshl_add_u32 v5, v4, 4, v5")
    A("  v_add_u32 v6, 4096, v5")
    A("  s_lshl_b32 s38, s34, 14              ; (head*64+tile)*16384")
    A("  s_lshl_b32 s36, s35, 13              ; t*16*512")
    A("  s_add_u32 s36, s36, s38")
    A("  v_and_b32 v7, 15, v2")
    A("  v_lshlrev_b32 v8, 1, v7")
    A("  s_lshl_b32 s39, s34, 1")
    A("  s_add_u32 s39, s39, s35")
    A("  s_lshl_b32 s39, s39, 5")
    A("  s_waitcnt lgkmcnt(0)")
    stamp(A, 2)
    if PROBE: A("  s_memrealtime s[74:75]")
    srd(A, 44, 12, 13, 4 << 20)
    for j in range(8):
        A(f"  buffer_load_dwordx4 v[{12+4*j}:{15+4*j}], v{5 + j//4}, s[44:47], s36 offen offset:{(j%4)*512}")
    srd(A, 48, 14, 15, 16384)
    srd(A, 52, 16, 17, 16384)
    A("  buffer_load_ushort v10, v8, s[48:51], s39 offen")
    A("  buffer_load_ushort v11, v8, s[52:55], s39 offen")
    srd(A, 40, 26, 27, WS_USED)
    A("  v_lshlrev_b32 v9, 4, v2")
    A("  s_lshl_b32 s37, s35, 10")
    A("  s_add_u32 s37, s37, s38")
    A("  s_add_u32 s37, s37, 8192")
    A("  s_lshl_b32 s39, s39, 1")
    A(f"  s_add_u32 s39, s39, {VS_OFF:#x}")
    A("  s_mov_b32 s56, 0x22222222")
    A("  s_mov_b32 s57, 0x11111111")
    stamp(A, 3)
    A("  s_waitcnt vmcnt(0)")
    stamp(A, 4)
    if PROBE: A("  s_memrealtime s[76:77]")
    A("  v_or3_b32 v44, v12, v13, v14")
    for k in range(15, 43, 2):
        A(f"  v_or3_b32 v44, v44, v{k}, v{k+1}")
    A("  v_or_b32 v44, v44, v43")
    for e in range(4):
        A(f"  v_lshl_or_b32 v{48+e}, v{16+e}, 4, v{12+e}")
    for j in range(2, 8):
        for e in range(4):
            A(f"  v_lshl_or_b32 v{48+e}, v{12+4*j+e}, {4*j}, v{48+e}")
    A("  v_cmp_lt_u32 vcc, 3, v44")
    for e in range(4):
        A(f"  v_lshlrev_b32 v{52+e}, 1, v{48+e}")
    for e in range(4):
        A(f"  v_bitop3_b32 v{52+e}, v{48+e}, v{52+e}, s56 bitop3:0x82")
    for e in range(4):
        A(f"  v_bitop3_b32 v{48+e}, v{48+e}, v{48+e}, s56 bitop3:0x02")
    for e in range(4):
        A(f"  v_lshl_or_b32 v{48+e}, v{48+e}, 2, v{52+e}")
    for e in range(4):
        A(f"  v_or_b32 v{48+e}, s57, v{48+e}")
    A(f"  buffer_store_dwordx4 v[48:51], v9, s[40:43], s37 offen {stflags}")
    A("  s_cmp_lg_u64 vcc, 0")
    A("  s_cselect_b32 s58, -1, 0")
    A("  s_cselect_b32 s59, -1, 0")
    A("  v_and_b32 v45, 0x7fff, v10")
    A(f"  v_subrev_u32 v46, {(127-40)<<7:#x}, v45")
    A(f"  v_cmp_lt_u32 vcc, {80<<7:#x}, v46     ; outside [2^-40, 2^40]")
    A("  v_cmp_ne_u32 s[60:61], 0, v45")
    A("  s_and_b64 vcc, vcc, s[60:61]")
    A("  s_or_b64 s[58:59], s[58:59], vcc")
    A("  v_cmp_ne_u32 vcc, 0x3fc0, v11         ; vz != 1.5")
    A("  s_or_b64 vcc, vcc, s[58:59]")
    A("  v_lshlrev_b32 v10, 16, v10")
    A("  v_mov_b32 v46, 0x7fc00000")
    A("  v_cndmask_b32 v10, v10, v46, vcc")
    A("  v_lshlrev_b32 v8, 2, v7")
    A("  v_cmp_gt_u32 vcc, 16, v2")
    A("  s_and_saveexec_b64 s[60:61], vcc")
    A(f"  buffer_store_dword v10, v8, s[40:43], s39 offen {stflags}")
    if PROBE:
        A("  s_waitcnt vmcnt(0)")
        A("  s_memrealtime s[78:79]")
        A("  s_mul_i32 s35, s2, 10")
        A("  s_add_u32 s35, s35, s30")
        A("  s_lshl_b32 s35, s35, 4")
        A(f"  s_add_u32 s35, s35, {PROBE_OFF:#x}")
        A("  s_mov_b32 s42, 0x4000000")
        A("  s_waitcnt lgkmcnt(0)")
        A("  s_mov_b64 exec, 1")
        A("  v_mov_b32 v8, s72\n  v_mov_b32 v9, s74\n  v_mov_b32 v10, s76\n  v_mov_b32 v11, s78\n  v_mov_b32 v12, 0")
        A("  buffer_store_dwordx4 v[8:11], v12, s[40:43], s35 offen")
    if DIAG:
        stamp(A, 5)
        A("  s_waitcnt vmcnt(0)")
        stamp(A, 6); stamp(A, 7, True)
        A("  s_mul_i32 s35, s2, 10")
        A("  s_add_u32 s35, s35, s30")
        stamp_dump(A, 26, 35, 0, 8)
    A("LP_end:")
    A("  s_endpgm")
```

```python
import sys
from common import *
import prep, attn
A = Asm()
A(HEADER.rstrip("\n"))
A(f"; @launch kernel=kvq_prep_kernel grid=(256,1,1) block=(640,1,1) lds=0")
A(f"; @launch kernel=kvq_attn_kernel grid=(256,1,1) block=(256,1,1) lds={attn.LDS_TOTAL}")
A('.amdgcn_target "amdgcn-amd-amdhsa--gfx950"')
A(".text")
A(".globl kvq_prep_kernel")
prep.gen_prep(A, "kvq_prep_kernel")
A(".globl kvq_attn_kernel")
attn.gen_attn(A, "kvq_attn_kernel")
A('.section .rodata,"a"')
A(".p2align 6")
kdesc(A, "kvq_prep_kernel", 64, 64, 102 if (DIAG or PROBE) else 72)
A(".p2align 6")
kdesc(A, "kvq_attn_kernel", attn.NVGPR + attn.NAGPR, attn.NVGPR, 102 if (DIAG or PROBE) else 72)
out = sys.argv[1] if len(sys.argv) > 1 else "cdna_kernels/%s.s" % NAME
open(out, "w").write(A.text())
```
